```python
import torch

def _softmax(x, axis=-1):
    return torch.softmax(x, dim=axis)
def _gelu(x):
    return torch.nn.functional.gelu(x, approximate="tanh")
def _silu(x):
    return torch.nn.functional.silu(x)
def _sigmoid(x):
    return torch.sigmoid(x)
def _layernorm(x, axis=-1, eps=1e-5):
    m = x.mean(dim=axis, keepdim=True)
    v = x.var(dim=axis, keepdim=True, unbiased=False)
    return (x - m) / torch.sqrt(v + eps)
def _scatter_add(tgt, idx, src, axis=0):
    return tgt.clone().index_add_(axis, idx, src)
def _segment_sum(src, seg, n):
    out = torch.zeros((n,) + src.shape[1:], dtype=src.dtype)
    return out.index_add_(0, seg, src)
def _pad(x, pw):
    flat = tuple(v for pair in reversed(pw) for v in pair)
    return torch.nn.functional.pad(x, flat)

kernel_name = 'standalone__groupnorm__sampling'

def setup_inputs():

    _w = (lambda a: (lambda t: t.to(torch.bfloat16) if t.is_floating_point() else t)(torch.as_tensor(a)))
    B = 16
    G = 32
    cpg = max(1, 512 // G)
    C = G * cpg
    H, W = 32, 32
    return {
        "x": _w(abs((lambda *s: torch.randn(*s, dtype=torch.bfloat16) * 0.05)(B, C, H, W))),
        "g": _w((lambda *s: torch.randn(*s, dtype=torch.bfloat16) * 0.05)(C) + 1.0),
        "b": _w((lambda *s: torch.randn(*s, dtype=torch.bfloat16) * 0.4)(C)),
    }

def reference(x, g, b):
    G = 32
    B, C, H, W = x.shape[0], x.shape[1], x.shape[2], x.shape[3]
    xr = x.reshape(B, G, C // G, H, W)
    mu = xr.mean(axis=(2, 3, 4), keepdims=True)
    var = ((xr - mu) ** 2).mean(axis=(2, 3, 4), keepdims=True)
    xn = (xr - mu) / torch.sqrt(var + 1e-5)
    xn = xn.reshape(B, C, H, W)
    return xn * g[None, :, None, None] + b[None, :, None, None]
```

```python
import sys, os, subprocess
FL = {".": "", "n": "nt", "s": "sc1", "w": "sc1 nt", "v": "sc1", "z": "sc0 nt"}
def gen(spec, name="standalone__groupnorm__sampling"):
    d = dict(kv.split("=") for kv in spec.split(";") if kv)
    W = int(d.get("W", 4)); L = 32 // W; T = 64 * W
    cols = [int(x, 16) for x in d.get("map", "40,80,2000,20,200,100,400,800,1428").split(",")]
    ex = lambda s: (s * L)[:L] if len(s) == 1 else s
    la, lb = ex(d.get("la", ".")), ex(d.get("lb", d.get("la", ".")))
    sa, sb = ex(d.get("sa", "n")), ex(d.get("sb", d.get("sa", "n")))
    wa, wb = int(d.get("wa", L)), int(d.get("wb", L))
    o = []; e = o.append
    e(f"; @launch grid=(512,1,1) block=({T},1,1) lds=0")
    e('.amdgcn_target "amdgcn-amd-amdhsa--gfx950"')
    e(".text"); e(".p2align 13"); e(f".globl {name}_kernel"); e(".p2align 8"); e(f".type {name}_kernel,@function"); e(f"{name}_kernel:")
    e("    s_load_dwordx8 s[4:11], s[0:1], 0")
    e("    s_cmp_ge_u32 s2, 512"); e("    s_cbranch_scc1 L_end")
    if d.get("rt"):
        e("    s_load_dwordx4 s[16:19], s[0:1], 32")
        e("    s_waitcnt lgkmcnt(0)")
        e("    s_lshr_b32 s20, s17, 24"); e("    s_lshr_b32 s21, s19, 24"); e("    s_lshl_b32 s21, s21, 8"); e("    s_or_b32 s20, s20, s21")
        e("    s_bitcmp1_b32 s2, 8"); e("    s_cselect_b32 s3, s20, 0")
        for i in range(8):
            p = 16 if i < 4 else 18
            e(f"    s_bitcmp1_b32 s2, {i}"); e(f"    s_cselect_b32 s20, s{p}, 0"); e("    s_xor_b32 s3, s3, s20")
            if i % 4 != 3: e(f"    s_lshr_b64 s[{p}:{p+1}], s[{p}:{p+1}], 14")
        e("    s_and_b32 s3, s3, 0x3fff"); e("    s_lshl_b32 s3, s3, 10")
        cols = []
    else:
        e("    s_mov_b32 s3, 0")
    for i, c in enumerate(cols):
        e(f"    s_bitcmp1_b32 s2, {i}"); e(f"    s_cselect_b32 s12, {c<<10:#x}, 0"); e("    s_xor_b32 s3, s3, s12")
    lay = [int(ch) for ch in d.get("lay", "01234")]
    nj = L.bit_length() - 1
    e("    v_and_b32 v1, 63, v0"); e("    v_lshlrev_b32 v1, 4, v1")
    for k in range(5 - nj):
        e(f"    v_bfe_u32 v2, v0, {6+k}, 1"); e(f"    v_lshl_or_b32 v1, v2, {10+lay[nj+k]}, v1")
    e("    v_xor_b32 v1, s3, v1")
    for j in range(1, L):
        off = sum(((j >> k) & 1) << (10 + lay[k]) for k in range(nj))
        e(f"    v_xor_b32 v{1+j}, {off}, v1")
    v0 = 12 if L <= 8 else 20
    if "pa" in d or "pb" in d:
        e("    s_cmp_ge_u32 s2, 256"); e("    s_cbranch_scc1 L_pb"); e(f"    s_setprio {d.get('pa',0)}"); e("    s_branch L_pd"); e("L_pb:"); e(f"    s_setprio {d.get('pb',0)}"); e("L_pd:")
    if "hm" in d:
        e(f"    s_and_b32 s12, s2, {int(d['hm'],16)}"); e(f"    s_cmp_eq_u32 s12, {int(d.get('hv', d['hm']),16)}"); e(f"    s_cbranch_scc{0 if d.get('hn') else 1} L_y")
    same = (la, sa, wa) == (lb, sb, wb)
    if not same:
        e("    s_cmp_ge_u32 s2, 256"); e("    s_cbranch_scc1 L_b")
    def body(lf, sf, win):
        e("    s_waitcnt lgkmcnt(0)")
        for j in range(L):
            if j >= win: e(f"    s_waitcnt vmcnt({win-1})")
            if lf[j] != "x": e(f"    global_load_dwordx4 v[{v0+4*j}:{v0+4*j+3}], v{1+j}, s[4:5] {FL[lf[j]]}".rstrip())
        e("    s_waitcnt vmcnt(0)"); e("    s_barrier")
        if "S" in d: e(f"    s_sleep {d['S']}")
        order = range(L) if d.get("R", "0") == "0" else range(L - 1, -1, -1)
        for k, j in enumerate(order):
            if sf[k] != "x": e(f"    global_store_dwordx4 v{1+j}, v[{v0+4*j}:{v0+4*j+3}], s[10:11] {FL[sf[k]]}".rstrip())
        e("    s_endpgm")
    body(la, sa, wa)
    if not same:
        e("L_b:"); body(lb, sb, wb)
    if "hm" in d:
        e("L_y:")
        if "dy" in d: e(f"    s_sleep {d['dy']}")
        body(la, sa, int(d.get("wy", L)))
    e("L_end:"); e("    s_endpgm")
    e('.section .rodata,"a"'); e(".p2align 6"); e(f".amdhsa_kernel {name}_kernel")
    nv = v0 + 4 * L
    e(f"  .amdhsa_next_free_vgpr {nv}"); e("  .amdhsa_next_free_sgpr 32"); e(f"  .amdhsa_accum_offset {nv}")
    e("  .amdhsa_group_segment_fixed_size 0"); e("  .amdhsa_kernarg_size 48"); e("  .amdhsa_user_sgpr_count 2")
    e("  .amdhsa_user_sgpr_kernarg_segment_ptr 1"); e("  .amdhsa_system_sgpr_workgroup_id_x 1"); e(".end_amdhsa_kernel")
    return "\n".join(o) + "\n", T
def build(specs, outdir="mb"):
    sys.path.insert(0, "cdna_kernels")
    from cdna_launch import with_harness_metadata, address_register_problem
    os.makedirs(outdir, exist_ok=True)
    args = []
    for i, sp in enumerate(specs):
        s, T = gen(sp)
        h = with_harness_metadata(s, "standalone__groupnorm__sampling_kernel", 6, launch_lists=True)
        p = f"{outdir}/c{i:03d}"
        open(p + ".s", "w").write(h)
        subprocess.check_call(["clang", "-x", "assembler", "-target", "amdgcn-amd-amdhsa", "-mcpu=gfx950", p + ".s", "-o", p + ".co"])
        pr = address_register_problem(p + ".co", "standalone__groupnorm__sampling_kernel", None)
        assert pr is None, pr
        args += [f"mb/c{i:03d}.co", "512", str(T), "0", "0"]
    return args
def measure(specs, reps, iters, extra=()):
    import re
    args = build(specs) + list(extra)
    env = dict(os.environ, NOSYNC="1", NINST="16", NOCHECK="1")
    if os.environ.get("SYNC"): del env["NOSYNC"]
    res = {}
    for r in range(reps):
        out = subprocess.run(["timeout", "250", "./bench/bench", "5", str(iters)] + args, env=env, capture_output=True, text=True, cwd="code").stdout
        for m in re.finditer(r"mode 5 (\S+\.co)\s+med \S+ iqm (\S+)", out): res.setdefault(m.group(1), []).append(float(m.group(2)))
    return [res.get(a, []) for a in args[0::5]]
if __name__ == "__main__":
    reps, iters = int(sys.argv[1]), int(sys.argv[2])
    specs = [l.strip() for l in open(sys.argv[3]) if l.strip()]
    if reps == 0: build(specs); print("built"); sys.exit()
    extra = sys.argv[4:]
    r = measure(specs, reps, iters, extra)
    specs = specs + extra[0::5]
    for sp, v in sorted(zip(specs, r), key=lambda z: sum(z[1]) / max(len(z[1]), 1)):
        print("%.3f  %-60s | %s" % (sum(v) / max(len(v), 1), sp, " ".join("%.3f" % x for x in v)))
```
